```python
import torch

def _softmax(x, axis=-1):
    return torch.softmax(x, dim=axis)
def _gelu(x):
    return torch.nn.functional.gelu(x, approximate="tanh")
def _silu(x):
    return torch.nn.functional.silu(x)
def _sigmoid(x):
    return torch.sigmoid(x)
def _layernorm(x, axis=-1, eps=1e-5):
    m = x.mean(dim=axis, keepdim=True)
    v = x.var(dim=axis, keepdim=True, unbiased=False)
    return (x - m) / torch.sqrt(v + eps)
def _scatter_add(tgt, idx, src, axis=0):
    return tgt.clone().index_add_(axis, idx, src)
def _segment_sum(src, seg, n):
    out = torch.zeros((n,) + src.shape[1:], dtype=src.dtype)
    return out.index_add_(0, seg, src)
def _pad(x, pw):
    flat = tuple(v for pair in reversed(pw) for v in pair)
    return torch.nn.functional.pad(x, flat)

kernel_name = 'standalone__gqa_softmax__near_ridge'

def setup_inputs():

    _w = (lambda a: (lambda t: t.to(torch.bfloat16) if t.is_floating_point() else t)(torch.as_tensor(a)))
    B, Hq, Hkv, Sq, Sk, D = 8, 16, 8, 288, 1024, 256
    return {
        "q": _w((lambda *s: torch.randn(*s, dtype=torch.bfloat16) * 0.8)(B, Hq, Sq, D)),
        "k": _w((lambda *s: torch.randn(*s, dtype=torch.bfloat16) * 0.8)(B, Hkv, Sk, D)),
        "v": _w((lambda *s: torch.randn(*s, dtype=torch.bfloat16) * 0.05)(B, Hkv, Sk, D)),
    }

def reference(q, k, v):
    B, Hq, Sq, D = q.shape
    Hkv = k.shape[1]
    rep = Hq // Hkv
    k = (lambda x, n, axis: torch.repeat_interleave(x, n, dim=axis))(k, rep, axis=1)
    v = (lambda x, n, axis: torch.repeat_interleave(x, n, dim=axis))(v, rep, axis=1)
    scale = D ** -0.5
    scores = torch.einsum("bhqd,bhkd->bhqk", q, k) * scale
    p = _softmax(scores, axis=-1)
    return torch.einsum("bhqk,bhkd->bhqd", p, v)
```

```python
import re

def R(t, a, n=1):
    return [(t, a + i) for i in range(n)]
def rs(t, a, n=1):
    return f"{t}{a}" if n == 1 else f"{t}[{a}:{a+n-1}]"

class Op:
    __slots__ = ("text", "kind", "rd", "wr", "tag", "crd")
    def __init__(self, text, kind, rd=(), wr=(), tag=None, crd=()):
        self.text, self.kind, self.rd, self.wr, self.tag, self.crd = text, kind, list(rd), list(wr), tag, list(crd)
    def __repr__(self):
        return self.text

def mfma(dt, d, at, a, bt, b, czero=False, tag=None):
    c = "0" if czero else rs(dt, d, 4)
    return Op(f"v_mfma_f32_16x16x32_bf16 {rs(dt,d,4)}, {rs(at,a,4)}, {rs(bt,b,4)}, {c}", "mfma",
              rd=R(at, a, 4) + R(bt, b, 4), wr=R(dt, d, 4), crd=([] if czero else R(dt, d, 4)), tag=tag)
def dsr(name, t, d, n, addr, off, tag=None):
    assert 0 <= off < 65536, off
    return Op(f"{name} {rs(t,d,n)}, v{addr} offset:{off}", "dsr", rd=R('v', addr), wr=R(t, d, n), tag=tag)
def ds_r128(t, d, addr, off, tag=None): return dsr("ds_read_b128", t, d, 4, addr, off, tag)
def ds_r64(t, d, addr, off, tag=None): return dsr("ds_read_b64", t, d, 2, addr, off, tag)
def ds_r32(t, d, addr, off, tag=None): return dsr("ds_read_b32", t, d, 1, addr, off, tag)
def ds_tr(t, d, addr, off, tag=None): return dsr("ds_read_b64_tr_b16", t, d, 2, addr, off, tag)
def dsw(n, t, s, addr, off, tag=None):
    assert 0 <= off < 65536, off
    return Op(f"ds_write_b{32*n} v{addr}, {rs(t,s,n)} offset:{off}", "dsw", rd=R('v', addr) + R(t, s, n), tag=tag)
def valu(text, rd, wr, tag=None, kind="valu"):
    return Op(text, kind, rd=rd, wr=wr, tag=tag)
def salu(text, tag=None, wr=(), rd=()):
    return Op(text, "salu", tag=tag, wr=wr, rd=rd)
def wait(vm=None, lgkm=None, tag=None):
    s = "s_waitcnt"
    if vm is not None: s += f" vmcnt({vm})"
    if lgkm is not None: s += f" lgkmcnt({lgkm})"
    o = Op(s, "wait", tag=tag); o.crd = [vm, lgkm]
    return o
def nop(n):
    o = Op(f"s_nop {n}", "nop"); o.crd = [n]; return o
def bar(tag=None): return Op("s_barrier", "bar", tag=tag)
def label(name): return Op(name + ":", "label")

def states(o):
    if o.kind == "label": return 0
    if o.kind == "nop": return o.crd[0] + 1
    return 1

def check(stream, name=""):
    errs = []
    pend = []
    pos = 0
    last_mfma_wr, last_mfma_c, last_valu_wr, last_trans_wr, last_m0, last_store_rd = {}, {}, {}, {}, -99, {}
    last_mfma = None
    for idx, o in enumerate(stream):
        k = o.kind
        if k == "wait":
            n = o.crd[1]
            if n is not None and len(pend) > n: pend = pend[len(pend) - n:] if n else []
        if k == "bar" and o.tag == "strict" and pend:
            errs.append(f"{name}[{idx}] barrier with outstanding DS: {pend}")
        touched = set(o.rd) | set(o.wr) | (set(o.crd) if k == "mfma" else set())
        for p in pend:
            if p.kind == "dsr" and set(p.wr) & touched:
                errs.append(f"{name}[{idx}] {o.text}  <- unwaited {p.text}")
        isv = k in ("valu", "trans", "perm")
        ismem = k in ("dsr", "dsw", "dma", "vst", "vld")
        def need(tbl, regs, n, why):
            for r in regs:
                if r in tbl and pos - tbl[r] - 1 < n:
                    errs.append(f"{name}[{idx}] {o.text}: {why} needs {n} has {pos - tbl[r] - 1} ({r})"); return
        if isv or ismem:
            need(last_mfma_wr, o.rd + o.wr, 8, "mfma D -> valu/mem")
        if isv:
            need(last_mfma_c, o.wr, 3, "mfma C read -> valu write")
            need(last_store_rd, o.wr, 2, "store data WAR")
        if k in ("valu", "perm"):
            need(last_trans_wr, o.rd, 1, "trans -> valu")
        if k == "perm":
            need(last_valu_wr, o.rd, 2, "valu -> permlane")
        if k == "rfl":
            need(last_valu_wr, o.rd, 1, "valu -> readfirstlane")
        if k == "mfma":
            need(last_valu_wr, o.rd + o.crd, 2, "valu -> mfma")
            need(last_mfma_wr, o.rd, 8, "mfma D -> mfma A/B")
        if k == "dma" and pos - last_m0 - 1 < 1:
            errs.append(f"{name}[{idx}] m0 -> dma")
        if k == "mfma":
            for r in o.wr: last_mfma_wr[r] = pos
            for r in o.crd: last_mfma_c[r] = pos
        if isv:
            for r in o.wr:
                last_valu_wr[r] = pos
                last_mfma_wr.pop(r, None)
                if k == "trans": last_trans_wr[r] = pos
        if k == "vst":
            for r in o.rd: last_store_rd[r] = pos
        if k == "salu" and "m0" in o.wr: last_m0 = pos
        if k in ("dsr", "dsw"): pend.append(o)
        pos += states(o)
    return errs

def autowait(stream):
    out, pend = [], []
    for o in stream:
        if o.kind == "wait" and o.crd[1] is not None:
            n = o.crd[1]
            if len(pend) > n: pend = pend[len(pend) - n:] if n else []
        touched = set(o.rd) | set(o.wr) | (set(o.crd) if o.kind == "mfma" else set())
        last = -1
        for i, p in enumerate(pend):
            if p.kind == "dsr" and set(p.wr) & touched: last = i
        if last >= 0:
            n = min(len(pend) - 1 - last, 15)
            out.append(wait(lgkm=n))
            pend = pend[len(pend) - n:] if n else []
        out.append(o)
        if o.kind in ("dsr", "dsw"): pend.append(o)
    return out

def autonop(stream):
    out = list(stream)
    for _ in range(2000):
        errs = [e for e in check(out) if "needs" in e or "m0 -> dma" in e]
        if not errs: return out
        e = errs[0]
        idx = int(re.search(r"\[(\d+)\]", e).group(1))
        m = re.search(r"needs (\d+) has (-?\d+)", e)
        n = int(m.group(1)) - int(m.group(2)) if m else 1
        out.insert(idx, nop(n - 1))
    raise RuntimeError("autonop did not converge")

def text(stream):
    return "\n".join((o.text if o.kind == "label" else "    " + o.text) for o in stream) + "\n"
```

```python
import sys, math, struct
from core import *

KNAME = "standalone__gqa_softmax__near_ridge_kernel"
CFG = dict(nt=" nt", st=" nt", X=40, Y=120, off=10, lead=6, stamp=False, align=True)

PIECE = 1040; SUB = 16 * PIECE; TILE = 2 * SUB
KB = 0; VB = 2 * TILE; PB = 4 * TILE; LB = 155648; LDS_BYTES = 163840
vD = [2, 3]; vK = [4, 5]; vV = [[6, 7], [8, 9]]; vPw, vPr, vP9 = 10, 11, 12
vT = list(range(13, 25))
vL = 25; vM = 30
vLane = 35
def PP(rt): return 36 + 4 * rt
def P(buf, rt): return 52 + 20 * buf + 4 * rt
def S(n): return 92 + 4 * n
def O(rt, dt): return ('v', 128 + (rt * 8 + dt) * 4) if rt < 4 else ('a', 160 + 4 * dt)
def Q(rt, ks): return (rt * 8 + ks) * 4
def F(i): return 192 + 4 * i
sQ, sK, sV, sO = 8, 12, 16, 20
sW, sM0, sKo, sVo, sCnt, sC, sFlag, sQo, sRG, sKG, sDH = 24, 25, 26, 27, 28, 29, 30, 31, 32, 33, 34
sT = 40
TILE_RT = [0, 1, 2, 3, 4, 0, 1, 2, 3]
def f2u(x): return struct.unpack("<I", struct.pack("<f", x))[0]
CSCALE = f2u(math.log2(math.e) / 16.0)

def V1(text, rd, wr, kind="valu"): return valu(text, [('v', r) for r in rd], [('v', r) for r in wr], kind=kind)

def qk(n, ks):
    return mfma('v', S(n), 'a', F(ks + (8 if n >= 5 else 0)), 'a', Q(TILE_RT[n], ks), czero=(ks == 0), tag="qk")
def pv(j, dt, e):
    rt, par = (e // 2, e % 2) if e < 8 else (4, 0)
    t, d = O(rt, dt)
    return mfma(t, d, 'a', F(2 * dt + par), 'v', PP(rt) if par else P(j % 2, rt), tag="pv")
def kread(tile, sec, ks): return ds_r128('a', F(ks + 8 * sec), vK[sec], KB + (tile % 2) * TILE + 16 * ks, tag="kr")
def vread(tile, dt, par, sec): return ds_tr('a', F(2 * dt + par) + 2 * sec, vV[par][sec], (tile % 2) * TILE + 32 * dt, tag="vr")
def pwrite(j, rt): return dsw(4 if rt < 4 else 2, 'v', P(j % 2, rt), vPw, 1024 * rt, tag="pw")
def pread(j, rt):
    return ds_r128('v', PP(rt), vPr, 1024 * rt, tag="pr") if rt < 4 else ds_r64('v', P(j % 2, 4) + 2, vP9, 4096, tag="pr")
def m0set(base, i, tag): return salu(f"s_add_u32 m0, s{sM0}, {base + PIECE * (i & 4) + 16 * (i & 3)}", wr=["m0"], tag=tag)
def dma(srd, soff, i, tag):
    return Op(f"buffer_load_dwordx4 v{vD[i >> 2]}, s[{srd}:{srd+3}], s{soff} offen offset:{1024 * (i & 3)}{CFG['nt']} lds", "dma", rd=R('v', vD[i >> 2]), tag=tag)
def dma_tile(srd, soff, base, tag):
    o = []
    for i in range(8): o += [m0set(base, i, tag), nop(0), dma(srd, soff, i, tag)]
    return o
def sm_fma(k):
    n = k // 4; r = S(n) + k % 4; m = vM + TILE_RT[n]
    return V1(f"v_fma_f32 v{r}, v{r}, s{sC}, -v{m}", [r, m], [r])
def sm_exp(k):
    r = S(k // 4) + k % 4
    return V1(f"v_exp_f32 v{r}, v{r}", [r], [r], kind="trans")
def sm_add(k):
    n = k // 4; r = S(n) + k % 4; l = vL + TILE_RT[n]
    return V1(f"v_add_f32 v{l}, v{l}, v{r}", [l, r], [l])
def sm_cvt(j, k):
    n = k // 4; r = S(n) + k % 4; d = P(j % 2, TILE_RT[n]) + (2 if n >= 5 else 0) + (k % 4) // 2
    return V1(f"v_cvt_pk_bf16_f32 v{d}, v{r}, v{r+1}", [r, r + 1], [d])

class Gap:
    def __init__(self): self.m = None; self.s = []; self.v = []
def build_gaps(j0, j1):
    G = {T: Gap() for T in range(144 * j0, 144 * j1)}
    def mem(T, o):
        if T in G: G[T].v.insert(0, o)
    def vec(T, o):
        if T in G: G[T].v.append(o)
    def sca(T, o):
        if T in G: G[T].s.append(o)
    X, Y, off = CFG['X'], CFG['Y'], CFG['off']
    for j in range(j0 - 1, j1 + 1):
        b = 144 * j
        for t in range(144):
            if b + t in G: G[b + t].m = qk(t // 8, t % 8) if t < 72 else pv(j, (t - 72) // 9, (t - 72) % 9)
        for k in range(36):
            g = b + 4 * k + off
            vec(g + 1, sm_fma(k)); vec(g + 3, sm_exp(k)); vec(g + 4, sm_add(k))
            if k % 2 == 1: vec(g + 6, sm_cvt(j + 1, k - 1))
        for ks, t in enumerate((122, 124, 126, 130, 132, 134, 138, 140)): mem(b + t, kread(j + 2, 0, ks))
        for ks in range(8): mem(b + 2 + 4 * ks, kread(j + 1, 1, ks))
        for rt, t in ((0, 128), (1, 136), (2, 144), (4, 152), (3, 160)): mem(b + t, pwrite(j + 1, rt))
        for i in range(8):
            sca(b + 2 + 4 * i, m0set(VB + ((j + 1) % 2) * TILE, i, "vdma")); mem(b + 3 + 4 * i, dma(sV, sVo, i, "vdma"))
            sca(b + 42 + 4 * i, m0set(KB + ((j + 1) % 2) * TILE, i, "kdma")); mem(b + 43 + 4 * i, dma(sK, sKo, i, "kdma"))
        sca(b + 32, salu(f"s_add_u32 s{sVo}, s{sVo}, 32768", tag="vdma"))
        sca(b + 72, salu(f"s_add_u32 s{sKo}, s{sKo}, 32768", tag="kdma"))
        for i, rt in enumerate((0, 1, 2, 3, 4)): mem(b + 42 + 4 * i, pread(j, rt))
        vpos = [44, 48, 52, 56] + list(range(60, 116, 2))
        for i in range(32): mem(b + vpos[i], vread(j, i // 4, (i % 4) // 2, i % 2))
        sca(b + X - 1, wait(vm=16, lgkm=0, tag="X")); sca(b + X, bar("strict"))
        sca(b + Y - 1, wait(vm=16, lgkm=0, tag="Y")); sca(b + Y, bar("strict"))
    return G

def place_waits(G, reserved):
    Ts = sorted(G)
    free = [T for T in Ts if not G[T].s and T % 144 not in reserved]
    nxt = {a: b for a, b in zip(free, free[1:] + [Ts[-1]])}
    pend = []
    for T in Ts:
        g = G[T]
        for o in g.s:
            if o.kind == "wait" and o.crd[1] is not None:
                n = o.crd[1]; pend = pend[len(pend) - n:] if n else []
        if T in nxt:
            cons = set()
            for U in range(T, nxt[T] + 1):
                if U > T:
                    o = G[U].m; cons |= set(o.rd) | set(o.wr)
                    if any(x.kind == "wait" and x.crd[1] == 0 for x in G[U].s): break
                if U < nxt[T]:
                    for o in G[U].v: cons |= set(o.rd) | set(o.wr)
            last = -1
            for i, (p, Ti) in enumerate(pend):
                if p.kind == "dsr" and set(p.wr) & cons: last = i
            if last >= 0:
                for i, (p, Ti) in enumerate(pend):
                    if Ti <= T - CFG['lead']: last = max(last, i)
                n = min(len(pend) - 1 - last, 15)
                g.s.append(wait(lgkm=n)); pend = pend[len(pend) - n:] if n else []
        for o in g.v:
            if o.kind in ("dsr", "dsw"): pend.append((o, T))

def flat(G, a, b):
    o = []
    for T in range(a, b): o += [G[T].m] + G[T].s + G[T].v
    return o

def setup():
    o = []
    A = lambda s: o.append(Op(s, "raw"))
    A("s_cmp_ge_u32 s2, 256"); A("s_cbranch_scc1 L_end")
    A("s_load_dwordx4 s[4:7], s[0:1], 0"); A("s_load_dwordx4 s[36:39], s[0:1], 16")
    if CFG['stamp']:
        A("s_load_dwordx2 s[60:61], s[0:1], 40"); A("s_memrealtime s[64:65]"); A("s_memtime s[66:67]")
    A("v_lshrrev_b32 v1, 6, v0"); A(f"v_and_b32 v{vLane}, 63, v0"); A(f"v_readfirstlane_b32 s{sW}, v1")
    A(f"s_and_b32 s{sT}, s2, 7"); A(f"s_lshr_b32 s{sT+1}, s2, 5"); A(f"s_lshl_b32 s{sT+1}, s{sT+1}, 3")
    A(f"s_add_u32 s{sT}, s{sT}, s{sT+1}")
    A(f"s_lshr_b32 s{sT+1}, s2, 3"); A(f"s_and_b32 s{sT+1}, s{sT+1}, 3")
    A(f"s_mul_i32 s{sT+2}, s{sT}, 294912"); A(f"s_mul_i32 s{sT+1}, s{sT+1}, 73728")
    A(f"s_add_u32 s{sT+2}, s{sT+2}, s{sT+1}")
    A(f"s_lshl_b32 s{sT+3}, s{sT}, 19")
    A(f"v_lshlrev_b32 v{vD[0]}, 4, v{vLane}"); A(f"v_add_u32 v{vD[1]}, 4096, v{vD[0]}")
    A(f"s_mul_i32 s{sM0}, s{sW}, {8 * PIECE}")
    A(f"s_lshr_b32 s{sRG}, s{sW}, 1"); A(f"s_and_b32 s{sKG}, s{sW}, 1"); A(f"s_xor_b32 s{sDH}, s{sRG}, s{sKG}")
    A(f"s_mov_b32 s{sC}, {CSCALE:#x}"); A(f"s_mov_b32 s{sFlag}, 0")
    for s in (sQ, sK, sV, sO): A(f"s_mov_b32 s{s+3}, 0x20000")
    A(f"s_mov_b32 s{sQ+2}, 73728"); A(f"s_mov_b32 s{sO+2}, 73728"); A(f"s_mov_b32 s{sK+2}, 524288"); A(f"s_mov_b32 s{sV+2}, 524288")
    A("s_waitcnt lgkmcnt(0)")
    for s, p, off in ((sK, 6, sT + 3), (sQ, 4, sT + 2), (sV, 36, sT + 3), (sO, 38, sT + 2)):
        A(f"s_add_u32 s{s}, s{p}, s{off}"); A(f"s_addc_u32 s{s+1}, s{p+1}, 0")
    return o

def addr_setup():
    o = []
    A = lambda s: o.append(Op(s, "raw"))
    L = vLane; t = vT
    A(f"v_bfe_u32 v{t[0]}, v{L}, 2, 1"); A(f"v_bfe_u32 v{t[1]}, v{L}, 3, 1"); A(f"v_lshl_add_u32 v{t[0]}, v{t[0]}, 1, v{t[1]}")
    A(f"v_and_b32 v{t[1]}, 3, v{L}"); A(f"v_lshl_add_u32 v{t[5]}, v{t[1]}, 2, v{t[0]}")
    A(f"v_lshrrev_b32 v{t[2]}, 4, v{L}")
    A(f"v_mul_u32_u24 v{t[4]}, {PIECE}, v{t[5]}"); A(f"v_lshl_add_u32 v{t[4]}, v{t[2]}, 7, v{t[4]}")
    A(f"s_mul_i32 s{sT}, s{sKG}, {SUB}"); A(f"s_lshl_b32 s{sT+1}, s{sRG}, 9"); A(f"s_xor_b32 s{sT+2}, s{sT+1}, 512")
    A(f"s_sub_u32 s{sT+3}, {SUB}, s{sT}")
    A(f"s_add_u32 s{sT+4}, s{sT}, s{sT+1}"); A(f"s_add_u32 s{sT+5}, s{sT}, s{sT+2}")
    A(f"s_add_u32 s{sT+6}, s{sT+3}, s{sT+1}"); A(f"s_add_u32 s{sT+7}, s{sT+3}, s{sT+2}")
    A(f"v_add_u32 v{vK[0]}, s{sT+4}, v{t[4]}"); A(f"v_add_u32 v{vK[1]}, s{sT+5}, v{t[4]}")
    A(f"s_mul_i32 s{sT}, s{sRG}, {SUB}"); A(f"s_add_u32 s{sT}, s{sT}, {VB}"); A(f"v_add_u32 v{t[6]}, s{sT}, v{t[4]}")
    A(f"v_bfe_u32 v{t[0]}, v{L}, 1, 3"); A(f"v_mul_u32_u24 v{t[7]}, {PIECE}, v{t[0]}"); A(f"v_and_b32 v{t[0]}, 1, v{L}")
    A(f"v_lshl_add_u32 v{t[7]}, v{t[0]}, 9, v{t[7]}"); A(f"v_lshl_add_u32 v{t[7]}, v{t[2]}, 7, v{t[7]}"); A(f"v_add_u32 v{t[7]}, {PB}, v{t[7]}")
    A(f"v_bfe_u32 v{t[0]}, v{L}, 4, 1"); A(f"v_bfe_u32 v{t[3]}, v{L}, 5, 1"); A(f"v_lshl_add_u32 v{t[0]}, v{t[0]}, 1, v{t[3]}")
    A(f"v_and_b32 v{t[3]}, 12, v{L}"); A(f"v_add_u32 v{t[0]}, v{t[0]}, v{t[3]}"); A(f"v_mul_u32_u24 v{t[3]}, {PIECE}, v{t[0]}")
    A(f"v_lshl_add_u32 v{t[3]}, v{t[1]}, 3, v{t[3]}")
    A(f"s_lshl_b32 s{sT}, s{sDH}, 8"); A(f"s_add_u32 s{sT}, s{sT}, {VB}"); A(f"v_add_u32 v{t[3]}, s{sT}, v{t[3]}")
    for par in (0, 1):
        for sec in (0, 1): A(f"v_add_u32 v{vV[par][sec]}, s{sT+4+2*par+sec}, v{t[3]}")
    for reg, x in ((vPw, 0), (vPr, 1), (vP9, 2)):
        A(f"s_xor_b32 s{sT}, s{sW}, {x}"); A(f"s_mul_i32 s{sT}, s{sT}, 5120"); A(f"s_add_u32 s{sT}, s{sT}, {PB}")
        A(f"v_add_u32 v{reg}, s{sT}, v{vD[0]}")
    A(f"v_bfe_u32 v{t[0]}, v{L}, 4, 1"); A(f"v_bfe_u32 v{t[1]}, v{L}, 5, 1"); A(f"v_lshlrev_b32 v{t[0]}, 5, v{t[0]}")
    A(f"v_lshl_add_u32 v{t[0]}, v{t[1]}, 4, v{t[0]}")
    A(f"s_lshl_b32 s{sT}, s{sRG}, 15"); A(f"s_lshl_b32 s{sT+1}, s{sDH}, 8"); A(f"s_add_u32 s{sT}, s{sT}, s{sT+1}")
    A(f"v_lshl_add_u32 v{t[8]}, v{t[5]}, 10, v{t[0]}"); A(f"v_add_u32 v{t[8]}, s{sT}, v{t[8]}")
    A(f"s_lshl_b32 s{sT}, s{sRG}, 7"); A(f"s_add_u32 s{sT}, s{sT}, s{sT+1}"); A(f"s_add_u32 s{sT}, s{sT}, 65536")
    A(f"v_and_b32 v{t[1]}, 15, v{L}"); A(f"v_lshl_add_u32 v{t[9]}, v{t[1]}, 9, v{t[0]}"); A(f"v_add_u32 v{t[9]}, s{sT}, v{t[9]}")
    A(f"s_lshl_b32 s{sT}, s{sW}, 11"); A(f"s_add_u32 s{sT}, s{sT}, {LB}"); A(f"v_add_u32 v{t[10]}, s{sT}, v{vD[0]}")
    return o
vQa, vQ8a, vSt, vSt8, vLx = vT[6], vT[7], vT[8], vT[9], vT[10]

def stamp(i):
    return [Op(f"s_memtime s[{68+2*i}:{69+2*i}]", "raw")] if CFG['stamp'] else []

def softmax_ops(j, n):
    o = [sm_fma(4 * n + i) for i in range(4)] + [sm_exp(4 * n + i) for i in range(4)]
    o += [sm_add(4 * n), sm_add(4 * n + 1), sm_cvt(j, 4 * n), sm_add(4 * n + 2), sm_add(4 * n + 3), sm_cvt(j, 4 * n + 2)]
    return o

def interleave(ms, fill, start=0):
    o = []; fill = list(fill)
    for i, m in enumerate(ms):
        o.append(m)
        if i < start: continue
        slots = 2
        while fill and slots:
            f = fill[0]
            c = 2 if f.kind == "trans" else 1
            if c > slots or (f.kind in ("dsr", "dsw", "dma") and slots < 2): break
            o.append(fill.pop(0)); slots -= c
    return o + fill

def prologue(G):
    o = [label("L_restart")]
    A = lambda s: o.append(Op(s, "raw"))
    A(f"s_lshl_b32 s{sKo}, s{sW}, 13"); A(f"s_mov_b32 s{sVo}, s{sKo}")
    A(f"s_lshl_b32 s{sQo}, s{sRG}, 15"); A(f"s_lshl_b32 s{sT}, s{sKG}, 13"); A(f"s_add_u32 s{sQo}, s{sQo}, s{sT}")
    o += dma_tile(sK, sKo, KB, "p"); A(f"s_add_u32 s{sKo}, s{sKo}, 32768")
    o += dma_tile(sQ, sQo, VB, "p"); A(f"s_add_u32 s{sQo}, s{sQo}, 16384")
    o += dma_tile(sQ, sQo, VB + TILE, "p")
    A(f"s_lshl_b32 s{sQo}, s{sW}, 11"); A(f"s_add_u32 s{sQo}, s{sQo}, 65536"); A(f"s_mul_i32 s{sT}, s{sW}, {2*PIECE}")
    for i in range(2):
        o += [salu(f"s_add_u32 m0, s{sT}, {PB + 16 * i}", wr=["m0"]), nop(0), dma(sQ, sQo, i, "p")]
    o += dma_tile(sK, sKo, KB + TILE, "p"); A(f"s_add_u32 s{sKo}, s{sKo}, 32768")
    o += addr_setup()
    for r in range(128, 256): o.append(V1(f"v_mov_b32 v{r}, 0", [], [r]))
    for r in range(160, 192): o.append(valu(f"v_accvgpr_write_b32 a{r}, 0", [], [('a', r)]))
    for i in range(5): o.append(V1(f"v_mov_b32 v{vL+i}, 0", [], [vL + i]))
    A(f"s_mov_b32 s{sCnt}, 8")
    qr = lambda rt, ks: ds_r128('a', Q(rt, ks), vQa, (rt >> 1) * TILE + (rt & 1) * 512 + 16 * ks) if rt < 4 else ds_r128('a', Q(4, ks), vQ8a, 16 * ks)
    ch = lambda n: [qk(n, ks) for ks in range(8)]
    o += [wait(vm=18), bar()] + stamp(0)
    for ks in range(8): o += [kread(0, 0, ks), qr(0, ks)]
    fill = [kread(0, 1, ks) for ks in range(8)] + [qr(1, ks) for ks in range(8)]
    o += fill[:8] + interleave(ch(0), fill[8:]) + ch(5)
    o += interleave(ch(1) + ch(6), softmax_ops(0, 0) + softmax_ops(0, 5))
    o += softmax_ops(0, 1) + softmax_ops(0, 6)
    o += [wait(vm=8, lgkm=0), bar("strict")] + stamp(1)
    for rt in (2, 3): o += [qr(rt, ks) for ks in range(8)]
    d = dma_tile(sV, sVo, VB, "p") + [salu(f"s_add_u32 s{sVo}, s{sVo}, 32768")] + dma_tile(sK, sKo, KB, "p") + [salu(f"s_add_u32 s{sKo}, s{sKo}, 32768")]
    o += interleave(ch(2), [qr(4, ks) for ks in range(8)])
    o += d
    o += interleave(ch(3) + ch(4), softmax_ops(0, 2) + softmax_ops(0, 3), start=1)
    o += [wait(vm=16, lgkm=0), bar("strict")]
    tail = set(x.text for T in range(0, 40) for x in G[T].v)
    s8 = [x for x in softmax_ops(0, 8) if x.text not in tail]
    kr = [kread(1, 0, ks) for ks in range(8)]
    s4 = softmax_ops(0, 4)
    o += interleave(ch(7) + ch(8), kr + s4)
    o += softmax_ops(0, 7) + s8
    o += [pwrite(0, rt) for rt in range(5) if pwrite(0, rt).text not in tail]
    o += [wait(lgkm=0)] + stamp(2)
    return autonop(autowait(o))

def xlane(op, r, t):
    o = []
    for sw in ("v_permlane32_swap_b32", "v_permlane16_swap_b32"):
        o += [V1(f"v_mov_b32 v{t}, v{r}", [r], [t]), V1(f"{sw} v{r}, v{t}", [r, t], [r, t], kind="perm"), V1(f"{op} v{r}, v{r}, v{t}", [r, t], [r])]
    return o
def xlane5(op, base, tmps):
    seqs = [xlane(op, base + i, tmps[i]) for i in range(5)]
    return [s[k] for k in range(6) for s in seqs]

def exchange5(op, base, X1, X2, X3):
    a = vT[0:3]
    o = [V1(f"v_xor_b32 v{a[i]}, {2048 * (i + 1)}, v{vLx}", [vLx], [a[i]]) for i in range(3)]
    for x, ad in ((X1, a[0]), (X2, a[1]), (X3, a[2])):
        o += [ds_r128('v', x, ad, 0), ds_r32('v', x + 4, ad, 1024)]
    for i in range(5): o.append(V1(f"{op} v{base+i}, v{base+i}, v{X1+i}", [base + i, X1 + i], [base + i]))
    for i in range(5): o.append(V1(f"{op} v{X2+i}, v{X2+i}, v{X3+i}", [X2 + i, X3 + i], [X2 + i]))
    o.append(V1(f"{op} v{base+4}, v{base+4}, v{X2+4}", [base + 4, X2 + 4], [base + 4]))
    return o
def publish5(base, tmp):
    o = [V1(f"v_mov_b32 v{tmp+i}, v{base+i}", [base + i], [tmp + i]) for i in range(4)]
    return o + [dsw(4, 'v', tmp, vLx, 0), dsw(1, 'v', base + 4, vLx, 1024)]

def final(G):
    j = 15
    o = [label("L_final")] + stamp(3)
    A = lambda s: o.append(Op(s, "raw"))
    b = 144 * 3
    sm_tail = set(x.text for x in softmax_ops(1, 8))
    for T in range(b, b + 40):
        for x in G[T].v:
            if (x.kind in ("valu", "trans") and x.text in sm_tail and T < b + CFG['off'] + 4) or x.tag == "pw": o.append(x)
    X1, X2, X3 = S(0), S(2), S(4)
    o += xlane5("v_add_f32", vL, list(range(S(0), S(0) + 5)))
    o += publish5(vL, S(6))
    o += [wait(vm=0, lgkm=0), bar("strict")]
    o += [pread(j, rt) for rt in range(5)]
    vr = [vread(j, i // 4, (i % 4) // 2, i % 2) for i in range(32)]
    o += vr[:4]
    o += exchange5("v_add_f32", vL, X1, X2, X3)
    mx, mn = vT[3], vT[4]
    vals = [vL + i for i in range(5)] + [X2 + i for i in range(4)]
    A(f"s_mov_b32 s{sT}, {f2u(2.0**60):#x}"); A(f"s_mov_b32 s{sT+1}, {f2u(2.0**-60):#x}")
    A(f"s_mov_b64 s[{sT+2}:{sT+3}], 0")
    for r in vals:
        o.append(V1(f"v_cmp_nle_f32 vcc, s{sT+1}, v{r}", [r], []))
        A(f"s_or_b64 s[{sT+2}:{sT+3}], s[{sT+2}:{sT+3}], vcc")
        o.append(V1(f"v_cmp_nge_f32 vcc, s{sT}, v{r}", [r], []))
        A(f"s_or_b64 s[{sT+2}:{sT+3}], s[{sT+2}:{sT+3}], vcc")
    A(f"s_cselect_b32 s{sT}, 1, 0"); A(f"s_cmp_gt_u32 s{sT}, s{sFlag}"); A("s_cbranch_scc1 L_fallback")
    for i in range(5): o.append(V1(f"v_rcp_f32 v{vL+i}, v{vL+i}", [vL + i], [vL + i], kind="trans"))
    ms = [pv(j, u // 9, u % 9) for u in range(72)]
    o += interleave(ms, vr[4:])
    o += stamp(4)
    a0, a1 = vT[0], vT[1]
    A(f"s_lshl_b32 s{sT}, s{sW}, 13"); o.append(V1(f"v_add_u32 v{a0}, s{sT}, v{vD[0]}", [vD[0]], [a0]))
    o += [dsw(4, 'a', O(4, dt)[1], a0, 1024 * dt) for dt in range(8)]
    A(f"s_lshl_b32 s{sT}, s{sRG}, 12"); o.append(V1(f"v_add_u32 v{a0}, s{sT}, v{a0}", [a0], [a0]))
    o.append(V1(f"v_xor_b32 v{a1}, {3 << 13}, v{a0}", [a0], [a1]))
    A(f"s_mov_b32 s{sT+4}, 16384")
    def fin(src, l, dst, addr, soff, off):
        q = [V1(f"v_mul_f32 v{src+i}, v{src+i}, v{l}", [src + i, l], [src + i]) for i in range(8)]
        q += [V1(f"v_cvt_pk_bf16_f32 v{dst+i}, v{src+2*i}, v{src+2*i+1}", [src + 2 * i, src + 2 * i + 1], [dst + i]) for i in range(4)]
        sw = [V1(f"v_permlane16_swap_b32 v{dst+i}, v{dst+2+i}", [dst + i, dst + 2 + i], [dst + i, dst + 2 + i], kind="perm") for i in range(2)]
        st = Op(f"buffer_store_dwordx4 v[{dst}:{dst+3}], v{addr}, s[{sO}:{sO+3}], {soff} offen offset:{off}{CFG['st']}", "vst", rd=R('v', dst, 4) + R('v', addr))
        return q, sw + [st]
    pendq = []
    cnt = 0
    for rt in range(4):
        for u in range(4):
            q, r = fin(O(rt, 2 * u)[1], vL + rt, 36 + 4 * (cnt % 8), vSt, (f"s{sT+4}" if rt >= 2 else "0"), 512 * (rt & 1) + 64 * u)
            o += q[:4] + pendq + q[4:]; pendq = r; cnt += 1
        if rt == 0:
            o += [wait(lgkm=0), bar("strict")]
            for i in range(4): o += [ds_r128('v', S(0) + 4 * i, a0, 1024 * i), ds_r128('v', S(4) + 4 * i, a1, 1024 * i)]
    for i in range(16): o.append(V1(f"v_add_f32 v{S(0)+i}, v{S(0)+i}, v{S(4)+i}", [S(0) + i, S(4) + i], [S(0) + i]))
    for u in range(2):
        q, r = fin(S(0) + 8 * u, vL + 4, 36 + 4 * (cnt % 8), vSt8, "0", 64 * u)
        o += q[:4] + pendq + q[4:]; pendq = r; cnt += 1
    o += pendq
    if CFG['stamp']:
        o += stamp(5)
        A("s_waitcnt vmcnt(0)"); o += stamp(6); A("s_memrealtime s[82:83]"); A("s_waitcnt lgkmcnt(0)")
        A("s_mov_b32 s62, 0x10000000"); A("s_mov_b32 s63, 0x20000")
        A("v_mov_b32 v36, s64"); A("v_mov_b32 v37, s82"); A("v_mov_b32 v38, s66")
        for i in range(7): A(f"v_mov_b32 v{39+i}, s{68+2*i}")
        A("s_getreg_b32 s40, hwreg(HW_REG_XCC_ID)"); A("v_mov_b32 v46, s40"); A("v_mov_b32 v47, 0")
        A(f"s_lshl_b32 s40, s2, 2"); A(f"s_add_u32 s40, s40, s{sW}"); A("s_lshl_b32 s40, s40, 6"); A("v_mov_b32 v1, 0")
        A(f"v_cmp_eq_u32 vcc, 0, v{vLane}"); A("s_and_saveexec_b64 s[42:43], vcc")
        for i in range(3): A(f"buffer_store_dwordx4 v[{36+4*i}:{39+4*i}], v1, s[60:63], s40 offen offset:{16*i}")
    return o

def fallback():
    o = [label("L_fallback")]
    A = lambda s: o.append(Op(s, "raw"))
    for i in range(5): o.append(V1(f"v_mov_b32 v{vM+i}, 0xff800000", [], [vM + i]))
    A(f"s_lshl_b32 s{sKo}, s{sW}, 13"); A(f"s_mov_b32 s{sCnt}, 16")
    o.append(label("L_fb_loop"))
    o += [wait(vm=0, lgkm=0), bar()]
    o += dma_tile(sK, sKo, KB, "f"); A(f"s_add_u32 s{sKo}, s{sKo}, 32768")
    o += [wait(vm=0), bar()]
    o += [kread(0, s, ks) for s in range(2) for ks in range(8)] + [wait(lgkm=0)]
    o += [qk(n, ks) for n in range(9) for ks in range(8)] + [nop(7)]
    for n in range(9):
        m = vM + TILE_RT[n]
        for i in (0, 2): o.append(V1(f"v_max3_f32 v{m}, v{m}, v{S(n)+i}, v{S(n)+i+1}", [m, S(n) + i, S(n) + i + 1], [m]))
    A(f"s_sub_u32 s{sCnt}, s{sCnt}, 1"); A(f"s_cmp_lg_u32 s{sCnt}, 0"); A("s_cbranch_scc1 L_fb_loop")
    o += xlane5("v_max_f32", vM, list(range(S(0), S(0) + 5)))
    o += publish5(vM, S(6)) + [wait(lgkm=0), bar()]
    o += exchange5("v_max_f32", vM, S(0), S(2), S(4))
    for i in range(5): o.append(V1(f"v_mul_f32 v{vM+i}, s{sC}, v{vM+i}", [vM + i], [vM + i]))
    A(f"s_mov_b32 s{sFlag}, 1")
    o += [wait(vm=0, lgkm=0), bar()]
    A("s_branch L_restart")
    return autonop(autowait(o))

def generate():
    G = build_gaps(0, 8)
    place_waits(G, reserved={141, 142, 143})
    assert text(flat(G, 288, 576)) == text(flat(G, 576, 864))
    G[288 + 141].s.append(salu(f"s_sub_u32 s{sCnt}, s{sCnt}, 1"))
    G[288 + 142].s.append(salu(f"s_cmp_eq_u32 s{sCnt}, 0"))
    half0 = flat(G, 288, 432) + [Op("s_cbranch_scc1 L_final", "raw")]
    half1 = flat(G, 432, 576) + [Op("s_branch L_loop", "raw")]
    pro = prologue(G)
    fin = final(G)
    pre = pro + (half0 + half1) * 2 + half0
    fin = autonop(autowait(pre + fin))[len(pre):]
    errs = check(pre + fin)
    assert not errs, "\n".join(errs[:20])
    init = [V1(f"v_mov_b32 v{vM+i}, 0", [], [vM + i]) for i in range(5)]
    s = f"""; GQA attention forward, B8 Hq16 Hkv8 Sq288 Sk1024 D256, bf16.  Generated by gen/gen.py (hand-designed schedule).
; @launch grid=(256,1,1) block=(256,1,1) lds={LDS_BYTES}
.amdgcn_target "amdgcn-amd-amdhsa--gfx950"
.text
.globl {KNAME}
.p2align 8
.type {KNAME},@function
{KNAME}:
"""
    s += text(setup() + init + pro)
    if CFG['align']: s += "    .p2align 6\n"
    s += "L_loop:\n" + text(half0 + half1) + text(fin) + "L_end:\n    s_endpgm\n" + text(fallback())
    s += f""".section .rodata,"a"
.p2align 6
.amdhsa_kernel {KNAME}
  .amdhsa_next_free_vgpr 512
  .amdhsa_next_free_sgpr 102
  .amdhsa_accum_offset 256
  .amdhsa_group_segment_fixed_size 0
  .amdhsa_kernarg_size 48
  .amdhsa_user_sgpr_count 2
  .amdhsa_user_sgpr_kernarg_segment_ptr 1
  .amdhsa_system_sgpr_workgroup_id_x 1
.end_amdhsa_kernel
"""
    return s

if __name__ == "__main__":
    out = sys.argv[1]
    for a in sys.argv[2:]:
        k, v = a.split("=", 1)
        CFG[k] = type(CFG[k])(int(v)) if isinstance(CFG[k], (bool, int)) else (" " + v.replace("+", " ") if v else "")
    open(out, "w").write(generate())
```

```python
import sys, math, struct
from core import *

KNAME = "standalone__gqa_softmax__near_ridge_kernel"
CFG = dict(nt=" nt", st=" nt", X=40, Y=120, off=10, lead=6, stamp=False, align=True, diag=-1)

PIECE = 1040; SUB = 16 * PIECE; TILE = 2 * SUB
KB = 0; VB = 2 * TILE; PB = 4 * TILE; LB = 155648; LDS_BYTES = 163840
vD = [2, 3]; vK = [4, 5]; vV = [[6, 7], [8, 9]]; vPw, vPr, vP9 = 10, 11, 12
vT = list(range(13, 25))
vL = 25; vM = 30
vLane = 35
def PP(rt): return 36 + 4 * rt
def P(buf, rt): return 52 + 20 * buf + 4 * rt
def S(n): return 92 + 4 * n
def O(rt, dt): return ('v', 128 + (rt * 8 + dt) * 4) if rt < 4 else ('a', 160 + 4 * dt)
def Q(rt, ks): return (rt * 8 + ks) * 4
def F(i): return 192 + 4 * i
sQ, sK, sV, sO = 8, 12, 16, 20
sW, sM0, sKo, sVo, sCnt, sC, sFlag, sQo, sRG, sKG, sDH = 24, 25, 26, 27, 28, 29, 30, 31, 32, 33, 34
sT = 40
TILE_RT = [0, 1, 2, 3, 4, 0, 1, 2, 3]
def f2u(x): return struct.unpack("<I", struct.pack("<f", x))[0]
CSCALE = f2u(math.log2(math.e) / 16.0)

def V1(text, rd, wr, kind="valu"): return valu(text, [('v', r) for r in rd], [('v', r) for r in wr], kind=kind)

def qk(n, ks):
    return mfma('v', S(n), 'a', F(ks + (8 if n >= 5 else 0)), 'a', Q(TILE_RT[n], ks), czero=(ks == 0), tag="qk")
def pv(j, dt, e):
    rt, par = (e // 2, e % 2) if e < 8 else (4, 0)
    t, d = O(rt, dt)
    return mfma(t, d, 'a', F(2 * dt + par), 'v', PP(rt) if par else P(j % 2, rt), tag="pv")
def kread(tile, sec, ks): return ds_r128('a', F(ks + 8 * sec), vK[sec], KB + (tile % 2) * TILE + 16 * ks, tag="kr")
def vread(tile, dt, par, sec): return ds_tr('a', F(2 * dt + par) + 2 * sec, vV[par][sec], (tile % 2) * TILE + 32 * dt, tag="vr")
def pwrite(j, rt): return dsw(4 if rt < 4 else 2, 'v', P(j % 2, rt), vPw, 1024 * rt, tag="pw")
def pread(j, rt):
    return ds_r128('v', PP(rt), vPr, 1024 * rt, tag="pr") if rt < 4 else ds_r64('v', P(j % 2, 4) + 2, vP9, 4096, tag="pr")
def m0set(base, i, tag): return salu(f"s_add_u32 m0, s{sM0}, {base + PIECE * (i & 4) + 16 * (i & 3)}", wr=["m0"], tag=tag)
def dma(srd, soff, i, tag):
    return Op(f"buffer_load_dwordx4 v{vD[i >> 2]}, s[{srd}:{srd+3}], s{soff} offen offset:{1024 * (i & 3)}{CFG['nt']} lds", "dma", rd=R('v', vD[i >> 2]), tag=tag)
def dma_tile(srd, soff, base, tag):
    o = []
    for i in range(8): o += [m0set(base, i, tag), nop(0), dma(srd, soff, i, tag)]
    return o
def sm_fma(k):
    n = k // 4; r = S(n) + k % 4; m = vM + TILE_RT[n]
    return V1(f"v_fma_f32 v{r}, v{r}, s{sC}, -v{m}", [r, m], [r])
def sm_exp(k):
    r = S(k // 4) + k % 4
    return V1(f"v_exp_f32 v{r}, v{r}", [r], [r], kind="trans")
def sm_add(k):
    n = k // 4; r = S(n) + k % 4; l = vL + TILE_RT[n]
    return V1(f"v_add_f32 v{l}, v{l}, v{r}", [l, r], [l])
def sm_cvt(j, k):
    n = k // 4; r = S(n) + k % 4; d = P(j % 2, TILE_RT[n]) + (2 if n >= 5 else 0) + (k % 4) // 2
    return V1(f"v_cvt_pk_bf16_f32 v{d}, v{r}, v{r+1}", [r, r + 1], [d])

class Gap:
    def __init__(self): self.m = None; self.s = []; self.v = []
def build_gaps(j0, j1):
    G = {T: Gap() for T in range(144 * j0, 144 * j1)}
    def mem(T, o):
        if T in G: G[T].v.insert(0, o)
    def vec(T, o):
        if T in G: G[T].v.append(o)
    def sca(T, o):
        if T in G: G[T].s.append(o)
    X, Y, off = CFG['X'], CFG['Y'], CFG['off']
    for j in range(j0 - 1, j1 + 1):
        b = 144 * j
        for t in range(144):
            if b + t in G: G[b + t].m = qk(t // 8, t % 8) if t < 72 else pv(j, (t - 72) // 9, (t - 72) % 9)
        for k in range(36):
            g = b + 4 * k + off
            vec(g + 1, sm_fma(k)); vec(g + 3, sm_exp(k)); vec(g + 4, sm_add(k))
            if k % 2 == 1: vec(g + 6, sm_cvt(j + 1, k - 1))
        for ks, t in enumerate((122, 124, 126, 130, 132, 134, 138, 140)): mem(b + t, kread(j + 2, 0, ks))
        for ks in range(8): mem(b + 2 + 4 * ks, kread(j + 1, 1, ks))
        for rt, t in ((0, 128), (1, 136), (2, 144), (4, 152), (3, 160)): mem(b + t, pwrite(j + 1, rt))
        for i in range(8):
            sca(b + 2 + 4 * i, m0set(VB + ((j + 1) % 2) * TILE, i, "vdma")); mem(b + 3 + 4 * i, dma(sV, sVo, i, "vdma"))
            sca(b + 42 + 4 * i, m0set(KB + ((j + 1) % 2) * TILE, i, "kdma")); mem(b + 43 + 4 * i, dma(sK, sKo, i, "kdma"))
        sca(b + 32, salu(f"s_add_u32 s{sVo}, s{sVo}, 32768", tag="vdma"))
        sca(b + 72, salu(f"s_add_u32 s{sKo}, s{sKo}, 32768", tag="kdma"))
        for i, rt in enumerate((0, 1, 2, 3, 4)): mem(b + 42 + 4 * i, pread(j, rt))
        vpos = [44, 48, 52, 56] + list(range(60, 116, 2))
        for i in range(32): mem(b + vpos[i], vread(j, i // 4, (i % 4) // 2, i % 2))
        sca(b + X - 1, wait(vm=16, lgkm=0, tag="X")); sca(b + X, bar("strict"))
        sca(b + Y - 1, wait(vm=16, lgkm=0, tag="Y")); sca(b + Y, bar("strict"))
    return G

def place_waits(G, reserved):
    Ts = sorted(G)
    free = [T for T in Ts if not G[T].s and T % 144 not in reserved]
    nxt = {a: b for a, b in zip(free, free[1:] + [Ts[-1]])}
    pend = []
    for T in Ts:
        g = G[T]
        for o in g.s:
            if o.kind == "wait" and o.crd[1] is not None:
                n = o.crd[1]; pend = pend[len(pend) - n:] if n else []
        if T in nxt:
            cons = set()
            for U in range(T, nxt[T] + 1):
                if U > T:
                    o = G[U].m; cons |= set(o.rd) | set(o.wr)
                    if any(x.kind == "wait" and x.crd[1] == 0 for x in G[U].s): break
                if U < nxt[T]:
                    for o in G[U].v: cons |= set(o.rd) | set(o.wr)
            last = -1
            for i, (p, Ti) in enumerate(pend):
                if p.kind == "dsr" and set(p.wr) & cons: last = i
            if last >= 0:
                for i, (p, Ti) in enumerate(pend):
                    if Ti <= T - CFG['lead']: last = max(last, i)
                n = min(len(pend) - 1 - last, 15)
                g.s.append(wait(lgkm=n)); pend = pend[len(pend) - n:] if n else []
        for o in g.v:
            if o.kind in ("dsr", "dsw"): pend.append((o, T))

def flat(G, a, b):
    o = []
    for T in range(a, b): o += [G[T].m] + G[T].s + G[T].v
    return o

def setup():
    o = []
    A = lambda s: o.append(Op(s, "raw"))
    A("s_cmp_ge_u32 s2, 256"); A("s_cbranch_scc1 L_end")
    A("s_load_dwordx4 s[4:7], s[0:1], 0"); A("s_load_dwordx4 s[36:39], s[0:1], 16")
    if CFG['diag'] == 99: A("s_memrealtime s[64:65]")
    if CFG['stamp']:
        A("s_load_dwordx2 s[60:61], s[0:1], 40"); A("s_memrealtime s[64:65]"); A("s_memtime s[66:67]")
    A("v_lshrrev_b32 v1, 6, v0"); A(f"v_and_b32 v{vLane}, 63, v0"); A(f"v_readfirstlane_b32 s{sW}, v1")
    A(f"s_and_b32 s{sT}, s2, 7"); A(f"s_lshr_b32 s{sT+1}, s2, 5"); A(f"s_lshl_b32 s{sT+1}, s{sT+1}, 3")
    A(f"s_add_u32 s{sT}, s{sT}, s{sT+1}")
    A(f"s_lshr_b32 s{sT+1}, s2, 3"); A(f"s_and_b32 s{sT+1}, s{sT+1}, 3")
    A(f"s_mul_i32 s{sT+2}, s{sT}, 294912"); A(f"s_mul_i32 s{sT+1}, s{sT+1}, 73728")
    A(f"s_add_u32 s{sT+2}, s{sT+2}, s{sT+1}")
    A(f"s_lshl_b32 s{sT+3}, s{sT}, 19")
    A(f"v_lshlrev_b32 v{vD[0]}, 4, v{vLane}"); A(f"v_add_u32 v{vD[1]}, 4096, v{vD[0]}")
    A(f"s_mul_i32 s{sM0}, s{sW}, {8 * PIECE}")
    A(f"s_lshr_b32 s{sRG}, s{sW}, 1"); A(f"s_and_b32 s{sKG}, s{sW}, 1"); A(f"s_xor_b32 s{sDH}, s{sRG}, s{sKG}")
    A(f"s_mov_b32 s{sC}, {CSCALE:#x}"); A(f"s_mov_b32 s{sFlag}, 0")
    for s in (sQ, sK, sV, sO): A(f"s_mov_b32 s{s+3}, 0x20000")
    A(f"s_mov_b32 s{sQ+2}, 73728"); A(f"s_mov_b32 s{sO+2}, 73728"); A(f"s_mov_b32 s{sK+2}, 524288"); A(f"s_mov_b32 s{sV+2}, 524288")
    A("s_waitcnt lgkmcnt(0)")
    for s, p, off in ((sK, 6, sT + 3), (sQ, 4, sT + 2), (sV, 36, sT + 3), (sO, 38, sT + 2)):
        A(f"s_add_u32 s{s}, s{p}, s{off}"); A(f"s_addc_u32 s{s+1}, s{p+1}, 0")
    return o

def addr_setup():
    o = []
    A = lambda s: o.append(Op(s, "raw"))
    L = vLane; t = vT
    A(f"v_bfe_u32 v{t[0]}, v{L}, 2, 1"); A(f"v_bfe_u32 v{t[1]}, v{L}, 3, 1"); A(f"v_lshl_add_u32 v{t[0]}, v{t[0]}, 1, v{t[1]}")
    A(f"v_and_b32 v{t[1]}, 3, v{L}"); A(f"v_lshl_add_u32 v{t[5]}, v{t[1]}, 2, v{t[0]}")
    A(f"v_lshrrev_b32 v{t[2]}, 4, v{L}")
    A(f"v_mul_u32_u24 v{t[4]}, {PIECE}, v{t[5]}"); A(f"v_lshl_add_u32 v{t[4]}, v{t[2]}, 7, v{t[4]}")
    A(f"s_mul_i32 s{sT}, s{sKG}, {SUB}"); A(f"s_lshl_b32 s{sT+1}, s{sRG}, 9"); A(f"s_xor_b32 s{sT+2}, s{sT+1}, 512")
    A(f"s_sub_u32 s{sT+3}, {SUB}, s{sT}")
    A(f"s_add_u32 s{sT+4}, s{sT}, s{sT+1}"); A(f"s_add_u32 s{sT+5}, s{sT}, s{sT+2}")
    A(f"s_add_u32 s{sT+6}, s{sT+3}, s{sT+1}"); A(f"s_add_u32 s{sT+7}, s{sT+3}, s{sT+2}")
    A(f"v_add_u32 v{vK[0]}, s{sT+4}, v{t[4]}"); A(f"v_add_u32 v{vK[1]}, s{sT+5}, v{t[4]}")
    A(f"s_mul_i32 s{sT}, s{sRG}, {SUB}"); A(f"s_add_u32 s{sT}, s{sT}, {VB}"); A(f"v_add_u32 v{t[6]}, s{sT}, v{t[4]}")
    A(f"v_bfe_u32 v{t[0]}, v{L}, 1, 3"); A(f"v_mul_u32_u24 v{t[7]}, {PIECE}, v{t[0]}"); A(f"v_and_b32 v{t[0]}, 1, v{L}")
    A(f"v_lshl_add_u32 v{t[7]}, v{t[0]}, 9, v{t[7]}"); A(f"v_lshl_add_u32 v{t[7]}, v{t[2]}, 7, v{t[7]}"); A(f"v_add_u32 v{t[7]}, {PB}, v{t[7]}")
    A(f"v_bfe_u32 v{t[0]}, v{L}, 4, 1"); A(f"v_bfe_u32 v{t[3]}, v{L}, 5, 1"); A(f"v_lshl_add_u32 v{t[0]}, v{t[0]}, 1, v{t[3]}")
    A(f"v_and_b32 v{t[3]}, 12, v{L}"); A(f"v_add_u32 v{t[0]}, v{t[0]}, v{t[3]}"); A(f"v_mul_u32_u24 v{t[3]}, {PIECE}, v{t[0]}")
    A(f"v_lshl_add_u32 v{t[3]}, v{t[1]}, 3, v{t[3]}")
    A(f"s_lshl_b32 s{sT}, s{sDH}, 8"); A(f"s_add_u32 s{sT}, s{sT}, {VB}"); A(f"v_add_u32 v{t[3]}, s{sT}, v{t[3]}")
    for par in (0, 1):
        for sec in (0, 1): A(f"v_add_u32 v{vV[par][sec]}, s{sT+4+2*par+sec}, v{t[3]}")
    for reg, x in ((vPw, 0), (vPr, 1), (vP9, 2)):
        A(f"s_xor_b32 s{sT}, s{sW}, {x}"); A(f"s_mul_i32 s{sT}, s{sT}, 5120"); A(f"s_add_u32 s{sT}, s{sT}, {PB}")
        A(f"v_add_u32 v{reg}, s{sT}, v{vD[0]}")
    A(f"v_bfe_u32 v{t[0]}, v{L}, 4, 1"); A(f"v_bfe_u32 v{t[1]}, v{L}, 5, 1"); A(f"v_lshlrev_b32 v{t[0]}, 5, v{t[0]}")
    A(f"v_lshl_add_u32 v{t[0]}, v{t[1]}, 4, v{t[0]}")
    A(f"s_lshl_b32 s{sT}, s{sRG}, 15"); A(f"s_lshl_b32 s{sT+1}, s{sDH}, 8"); A(f"s_add_u32 s{sT}, s{sT}, s{sT+1}")
    A(f"v_lshl_add_u32 v{t[8]}, v{t[5]}, 10, v{t[0]}"); A(f"v_add_u32 v{t[8]}, s{sT}, v{t[8]}")
    A(f"s_lshl_b32 s{sT}, s{sRG}, 7"); A(f"s_add_u32 s{sT}, s{sT}, s{sT+1}"); A(f"s_add_u32 s{sT}, s{sT}, 65536")
    A(f"v_and_b32 v{t[1]}, 15, v{L}"); A(f"v_lshl_add_u32 v{t[9]}, v{t[1]}, 9, v{t[0]}"); A(f"v_add_u32 v{t[9]}, s{sT}, v{t[9]}")
    A(f"s_lshl_b32 s{sT}, s{sW}, 11"); A(f"s_add_u32 s{sT}, s{sT}, {LB}"); A(f"v_add_u32 v{t[10]}, s{sT}, v{vD[0]}")
    return o
vQa, vQ8a, vSt, vSt8, vLx = vT[6], vT[7], vT[8], vT[9], vT[10]

def stamp(i):
    if CFG['diag'] == i: return [Op("s_memrealtime s[64:65]", "raw")]
    return [Op(f"s_memtime s[{68+2*i}:{69+2*i}]", "raw")] if CFG['stamp'] else []

def softmax_ops(j, n):
    o = [sm_fma(4 * n + i) for i in range(4)] + [sm_exp(4 * n + i) for i in range(4)]
    o += [sm_add(4 * n), sm_add(4 * n + 1), sm_cvt(j, 4 * n), sm_add(4 * n + 2), sm_add(4 * n + 3), sm_cvt(j, 4 * n + 2)]
    return o

def interleave(ms, fill, start=0):
    o = []; fill = list(fill)
    for i, m in enumerate(ms):
        o.append(m)
        if i < start: continue
        slots = 2
        while fill and slots:
            f = fill[0]
            c = 2 if f.kind == "trans" else 1
            if c > slots or (f.kind in ("dsr", "dsw", "dma") and slots < 2): break
            o.append(fill.pop(0)); slots -= c
    return o + fill

def prologue(G):
    o = [label("L_restart")]
    A = lambda s: o.append(Op(s, "raw"))
    A(f"s_lshl_b32 s{sKo}, s{sW}, 13"); A(f"s_mov_b32 s{sVo}, s{sKo}")
    A(f"s_lshl_b32 s{sQo}, s{sRG}, 15"); A(f"s_lshl_b32 s{sT}, s{sKG}, 13"); A(f"s_add_u32 s{sQo}, s{sQo}, s{sT}")
    o += dma_tile(sK, sKo, KB, "p"); A(f"s_add_u32 s{sKo}, s{sKo}, 32768")
    o += dma_tile(sQ, sQo, VB, "p"); A(f"s_add_u32 s{sQo}, s{sQo}, 16384")
    o += dma_tile(sQ, sQo, VB + TILE, "p")
    A(f"s_lshl_b32 s{sQo}, s{sW}, 11"); A(f"s_add_u32 s{sQo}, s{sQo}, 65536"); A(f"s_mul_i32 s{sT}, s{sW}, {2*PIECE}")
    for i in range(2):
        o += [salu(f"s_add_u32 m0, s{sT}, {PB + 16 * i}", wr=["m0"]), nop(0), dma(sQ, sQo, i, "p")]
    o += dma_tile(sK, sKo, KB + TILE, "p"); A(f"s_add_u32 s{sKo}, s{sKo}, 32768")
    o += addr_setup()
    for r in range(128, 256): o.append(V1(f"v_mov_b32 v{r}, 0", [], [r]))
    for r in range(160, 192): o.append(valu(f"v_accvgpr_write_b32 a{r}, 0", [], [('a', r)]))
    for i in range(5): o.append(V1(f"v_mov_b32 v{vL+i}, 0", [], [vL + i]))
    A(f"s_mov_b32 s{sCnt}, 8")
    qr = lambda rt, ks: ds_r128('a', Q(rt, ks), vQa, (rt >> 1) * TILE + (rt & 1) * 512 + 16 * ks) if rt < 4 else ds_r128('a', Q(4, ks), vQ8a, 16 * ks)
    ch = lambda n: [qk(n, ks) for ks in range(8)]
    o += [wait(vm=18), bar()] + stamp(0)
    for ks in range(8): o += [kread(0, 0, ks), qr(0, ks)]
    fill = [kread(0, 1, ks) for ks in range(8)] + [qr(1, ks) for ks in range(8)]
    o += fill[:8] + interleave(ch(0), fill[8:]) + ch(5)
    o += interleave(ch(1) + ch(6), softmax_ops(0, 0) + softmax_ops(0, 5))
    o += softmax_ops(0, 1) + softmax_ops(0, 6)
    o += [wait(vm=8, lgkm=0), bar("strict")] + stamp(1)
    for rt in (2, 3): o += [qr(rt, ks) for ks in range(8)]
    d = dma_tile(sV, sVo, VB, "p") + [salu(f"s_add_u32 s{sVo}, s{sVo}, 32768")] + dma_tile(sK, sKo, KB, "p") + [salu(f"s_add_u32 s{sKo}, s{sKo}, 32768")]
    o += interleave(ch(2), [qr(4, ks) for ks in range(8)])
    o += d
    o += interleave(ch(3) + ch(4), softmax_ops(0, 2) + softmax_ops(0, 3), start=1)
    o += [wait(vm=16, lgkm=0), bar("strict")]
    tail = set(x.text for T in range(0, 40) for x in G[T].v)
    s8 = [x for x in softmax_ops(0, 8) if x.text not in tail]
    kr = [kread(1, 0, ks) for ks in range(8)]
    s4 = softmax_ops(0, 4)
    o += interleave(ch(7) + ch(8), kr + s4)
    o += softmax_ops(0, 7) + s8
    o += [pwrite(0, rt) for rt in range(5) if pwrite(0, rt).text not in tail]
    o += [wait(lgkm=0)] + stamp(2)
    return autonop(autowait(o))

def xlane(op, r, t):
    o = []
    for sw in ("v_permlane32_swap_b32", "v_permlane16_swap_b32"):
        o += [V1(f"v_mov_b32 v{t}, v{r}", [r], [t]), V1(f"{sw} v{r}, v{t}", [r, t], [r, t], kind="perm"), V1(f"{op} v{r}, v{r}, v{t}", [r, t], [r])]
    return o
def xlane5(op, base, tmps):
    seqs = [xlane(op, base + i, tmps[i]) for i in range(5)]
    return [s[k] for k in range(6) for s in seqs]

def exchange5(op, base, X1, X2, X3):
    a = vT[0:3]
    o = [V1(f"v_xor_b32 v{a[i]}, {2048 * (i + 1)}, v{vLx}", [vLx], [a[i]]) for i in range(3)]
    for x, ad in ((X1, a[0]), (X2, a[1]), (X3, a[2])):
        o += [ds_r128('v', x, ad, 0), ds_r32('v', x + 4, ad, 1024)]
    for i in range(5): o.append(V1(f"{op} v{base+i}, v{base+i}, v{X1+i}", [base + i, X1 + i], [base + i]))
    for i in range(5): o.append(V1(f"{op} v{X2+i}, v{X2+i}, v{X3+i}", [X2 + i, X3 + i], [X2 + i]))
    o.append(V1(f"{op} v{base+4}, v{base+4}, v{X2+4}", [base + 4, X2 + 4], [base + 4]))
    return o
def publish5(base, tmp):
    o = [V1(f"v_mov_b32 v{tmp+i}, v{base+i}", [base + i], [tmp + i]) for i in range(4)]
    return o + [dsw(4, 'v', tmp, vLx, 0), dsw(1, 'v', base + 4, vLx, 1024)]

def final(G):
    j = 15
    o = [label("L_final")] + stamp(3)
    A = lambda s: o.append(Op(s, "raw"))
    b = 144 * 3
    sm_tail = set(x.text for x in softmax_ops(1, 8))
    for T in range(b, b + 40):
        for x in G[T].v:
            if (x.kind in ("valu", "trans") and x.text in sm_tail and T < b + CFG['off'] + 4) or x.tag == "pw": o.append(x)
    X1, X2, X3 = S(0), S(2), S(4)
    o += xlane5("v_add_f32", vL, list(range(S(0), S(0) + 5)))
    o += publish5(vL, S(6))
    o += [wait(vm=0, lgkm=0), bar("strict")]
    o += [pread(j, rt) for rt in range(5)]
    vr = [vread(j, i // 4, (i % 4) // 2, i % 2) for i in range(32)]
    o += vr[:4]
    o += exchange5("v_add_f32", vL, X1, X2, X3)
    mx, mn = vT[3], vT[4]
    vals = [vL + i for i in range(5)] + [X2 + i for i in range(4)]
    A(f"s_mov_b32 s{sT}, {f2u(2.0**60):#x}"); A(f"s_mov_b32 s{sT+1}, {f2u(2.0**-60):#x}")
    A(f"s_mov_b64 s[{sT+2}:{sT+3}], 0")
    for r in vals:
        o.append(V1(f"v_cmp_nle_f32 vcc, s{sT+1}, v{r}", [r], []))
        A(f"s_or_b64 s[{sT+2}:{sT+3}], s[{sT+2}:{sT+3}], vcc")
        o.append(V1(f"v_cmp_nge_f32 vcc, s{sT}, v{r}", [r], []))
        A(f"s_or_b64 s[{sT+2}:{sT+3}], s[{sT+2}:{sT+3}], vcc")
    A(f"s_cselect_b32 s{sT}, 1, 0"); A(f"s_cmp_gt_u32 s{sT}, s{sFlag}"); A("s_cbranch_scc1 L_fallback")
    for i in range(5): o.append(V1(f"v_rcp_f32 v{vL+i}, v{vL+i}", [vL + i], [vL + i], kind="trans"))
    ms = [pv(j, u // 9, u % 9) for u in range(72)]
    o += interleave(ms, vr[4:])
    o += stamp(4)
    a0, a1 = vT[0], vT[1]
    A(f"s_lshl_b32 s{sT}, s{sW}, 13"); o.append(V1(f"v_add_u32 v{a0}, s{sT}, v{vD[0]}", [vD[0]], [a0]))
    o += [dsw(4, 'a', O(4, dt)[1], a0, 1024 * dt) for dt in range(8)]
    A(f"s_lshl_b32 s{sT}, s{sRG}, 12"); o.append(V1(f"v_add_u32 v{a0}, s{sT}, v{a0}", [a0], [a0]))
    o.append(V1(f"v_xor_b32 v{a1}, {3 << 13}, v{a0}", [a0], [a1]))
    A(f"s_mov_b32 s{sT+4}, 16384")
    def fin(src, l, dst, addr, soff, off):
        q = [V1(f"v_mul_f32 v{src+i}, v{src+i}, v{l}", [src + i, l], [src + i]) for i in range(8)]
        q += [V1(f"v_cvt_pk_bf16_f32 v{dst+i}, v{src+2*i}, v{src+2*i+1}", [src + 2 * i, src + 2 * i + 1], [dst + i]) for i in range(4)]
        sw = [V1(f"v_permlane16_swap_b32 v{dst+i}, v{dst+2+i}", [dst + i, dst + 2 + i], [dst + i, dst + 2 + i], kind="perm") for i in range(2)]
        st = Op(f"buffer_store_dwordx4 v[{dst}:{dst+3}], v{addr}, s[{sO}:{sO+3}], {soff} offen offset:{off}{CFG['st']}", "vst", rd=R('v', dst, 4) + R('v', addr))
        return q, sw + [st]
    pendq = []
    cnt = 0
    for rt in range(4):
        for u in range(4):
            q, r = fin(O(rt, 2 * u)[1], vL + rt, 36 + 4 * (cnt % 8), vSt, (f"s{sT+4}" if rt >= 2 else "0"), 512 * (rt & 1) + 64 * u)
            o += q[:4] + pendq + q[4:]; pendq = r; cnt += 1
        if rt == 0:
            o += [wait(lgkm=0), bar("strict")]
            for i in range(4): o += [ds_r128('v', S(0) + 4 * i, a0, 1024 * i), ds_r128('v', S(4) + 4 * i, a1, 1024 * i)]
    for i in range(16): o.append(V1(f"v_add_f32 v{S(0)+i}, v{S(0)+i}, v{S(4)+i}", [S(0) + i, S(4) + i], [S(0) + i]))
    for u in range(2):
        q, r = fin(S(0) + 8 * u, vL + 4, 36 + 4 * (cnt % 8), vSt8, "0", 64 * u)
        o += q[:4] + pendq + q[4:]; pendq = r; cnt += 1
    o += pendq
    if CFG['diag'] >= 0:
        o += stamp(5)
        A("s_waitcnt vmcnt(0)"); o += stamp(6); A("s_waitcnt lgkmcnt(0)")
        o.append(label("L_spin")); A("s_memrealtime s[66:67]"); A("s_waitcnt lgkmcnt(0)"); A("s_sub_u32 s66, s66, s64")
        A("s_cmp_lt_u32 s66, 6000"); A("s_cbranch_scc1 L_spin")
    if CFG['stamp']:
        o += stamp(5)
        A("s_waitcnt vmcnt(0)"); o += stamp(6); A("s_memrealtime s[82:83]"); A("s_waitcnt lgkmcnt(0)")
        A("s_mov_b32 s62, 0x10000000"); A("s_mov_b32 s63, 0x20000")
        A("v_mov_b32 v36, s64"); A("v_mov_b32 v37, s82"); A("v_mov_b32 v38, s66")
        for i in range(7): A(f"v_mov_b32 v{39+i}, s{68+2*i}")
        A("s_getreg_b32 s40, hwreg(HW_REG_XCC_ID)"); A("v_mov_b32 v46, s40"); A("v_mov_b32 v47, 0")
        A(f"s_lshl_b32 s40, s2, 2"); A(f"s_add_u32 s40, s40, s{sW}"); A("s_lshl_b32 s40, s40, 6"); A("v_mov_b32 v1, 0")
        A(f"v_cmp_eq_u32 vcc, 0, v{vLane}"); A("s_and_saveexec_b64 s[42:43], vcc")
        for i in range(3): A(f"buffer_store_dwordx4 v[{36+4*i}:{39+4*i}], v1, s[60:63], s40 offen offset:{16*i}")
    return o

def fallback():
    o = [label("L_fallback")]
    A = lambda s: o.append(Op(s, "raw"))
    for i in range(5): o.append(V1(f"v_mov_b32 v{vM+i}, 0xff800000", [], [vM + i]))
    A(f"s_lshl_b32 s{sKo}, s{sW}, 13"); A(f"s_mov_b32 s{sCnt}, 16")
    o.append(label("L_fb_loop"))
    o += [wait(vm=0, lgkm=0), bar()]
    o += dma_tile(sK, sKo, KB, "f"); A(f"s_add_u32 s{sKo}, s{sKo}, 32768")
    o += [wait(vm=0), bar()]
    o += [kread(0, s, ks) for s in range(2) for ks in range(8)] + [wait(lgkm=0)]
    o += [qk(n, ks) for n in range(9) for ks in range(8)] + [nop(7)]
    for n in range(9):
        m = vM + TILE_RT[n]
        for i in (0, 2): o.append(V1(f"v_max3_f32 v{m}, v{m}, v{S(n)+i}, v{S(n)+i+1}", [m, S(n) + i, S(n) + i + 1], [m]))
    A(f"s_sub_u32 s{sCnt}, s{sCnt}, 1"); A(f"s_cmp_lg_u32 s{sCnt}, 0"); A("s_cbranch_scc1 L_fb_loop")
    o += xlane5("v_max_f32", vM, list(range(S(0), S(0) + 5)))
    o += publish5(vM, S(6)) + [wait(lgkm=0), bar()]
    o += exchange5("v_max_f32", vM, S(0), S(2), S(4))
    for i in range(5): o.append(V1(f"v_mul_f32 v{vM+i}, s{sC}, v{vM+i}", [vM + i], [vM + i]))
    A(f"s_mov_b32 s{sFlag}, 1")
    o += [wait(vm=0, lgkm=0), bar()]
    A("s_branch L_restart")
    return autonop(autowait(o))

def generate():
    G = build_gaps(0, 8)
    place_waits(G, reserved={141, 142, 143})
    assert text(flat(G, 288, 576)) == text(flat(G, 576, 864))
    G[288 + 141].s.append(salu(f"s_sub_u32 s{sCnt}, s{sCnt}, 1"))
    G[288 + 142].s.append(salu(f"s_cmp_eq_u32 s{sCnt}, 0"))
    half0 = flat(G, 288, 432) + [Op("s_cbranch_scc1 L_final", "raw")]
    half1 = flat(G, 432, 576) + [Op("s_branch L_loop", "raw")]
    pro = prologue(G)
    fin = final(G)
    pre = pro + (half0 + half1) * 2 + half0
    fin = autonop(autowait(pre + fin))[len(pre):]
    errs = check(pre + fin)
    assert not errs, "\n".join(errs[:20])
    init = [V1(f"v_mov_b32 v{vM+i}, 0", [], [vM + i]) for i in range(5)]
    s = f"""; GQA attention forward, B8 Hq16 Hkv8 Sq288 Sk1024 D256, bf16.  Generated by gen/gen.py (hand-designed schedule).
; @launch grid=(256,1,1) block=(256,1,1) lds={LDS_BYTES}
.amdgcn_target "amdgcn-amd-amdhsa--gfx950"
.text
.globl {KNAME}
.p2align 8
.type {KNAME},@function
{KNAME}:
"""
    s += text(setup() + init + pro)
    if CFG['align']: s += "    .p2align 6\n"
    s += "L_loop:\n" + text(half0 + half1) + text(fin) + "L_end:\n    s_endpgm\n" + text(fallback())
    s += f""".section .rodata,"a"
.p2align 6
.amdhsa_kernel {KNAME}
  .amdhsa_next_free_vgpr 512
  .amdhsa_next_free_sgpr 102
  .amdhsa_accum_offset 256
  .amdhsa_group_segment_fixed_size 0
  .amdhsa_kernarg_size 48
  .amdhsa_user_sgpr_count 2
  .amdhsa_user_sgpr_kernarg_segment_ptr 1
  .amdhsa_system_sgpr_workgroup_id_x 1
.end_amdhsa_kernel
"""
    return s

if __name__ == "__main__":
    out = sys.argv[1]
    for a in sys.argv[2:]:
        k, v = a.split("=", 1)
        CFG[k] = type(CFG[k])(int(v)) if isinstance(CFG[k], (bool, int)) else (" " + v.replace("+", " ") if v else "")
    open(out, "w").write(generate())
```
